```python
import torch

def _softmax(x, axis=-1):
    return torch.softmax(x, dim=axis)
def _gelu(x):
    return torch.nn.functional.gelu(x, approximate="tanh")
def _silu(x):
    return torch.nn.functional.silu(x)
def _sigmoid(x):
    return torch.sigmoid(x)
def _layernorm(x, axis=-1, eps=1e-5):
    m = x.mean(dim=axis, keepdim=True)
    v = x.var(dim=axis, keepdim=True, unbiased=False)
    return (x - m) / torch.sqrt(v + eps)
def _scatter_add(tgt, idx, src, axis=0):
    return tgt.clone().index_add_(axis, idx, src)
def _segment_sum(src, seg, n):
    out = torch.zeros((n,) + src.shape[1:], dtype=src.dtype)
    return out.index_add_(0, seg, src)
def _pad(x, pw):
    flat = tuple(v for pair in reversed(pw) for v in pair)
    return torch.nn.functional.pad(x, flat)

kernel_name = 'concat_heads__mha_block_cached__mha_block_cached__decode'

def setup_inputs():

    _w = (lambda a: (lambda t: t.to(torch.bfloat16) if t.is_floating_point() else t)(torch.as_tensor(a)))
    def _A_setup():
        B, Sq, D = 4, 1, 512
        H, Sk, Dh = 32, 4096, 128
        return {
            "x": _w((lambda *s: torch.randn(*s, dtype=torch.bfloat16) * 0.8)(B, Sq, D)),
            "k_cache": _w((lambda *s: torch.randn(*s, dtype=torch.bfloat16) * 1.6)(B, H, Sk, Dh)),
            "v_cache": _w((lambda *s: torch.randn(*s, dtype=torch.bfloat16) * 0.2)(B, H, Sk, Dh)),
            "wq": _w((lambda *s: torch.randn(*s, dtype=torch.bfloat16) * 1.6)(D, H * Dh) * (D ** -0.5)),
            "wo": _w((lambda *s: torch.randn(*s, dtype=torch.bfloat16) * 0.2)(H * Dh, D) * ((H * Dh) ** -0.5)),
        }
    _A_in = _A_setup()

    def _B_setup():
        B, Sq, D = 4, 1, 512
        H, Sk, Dh = 32, 4096, 128
        return {
            "x": _w((lambda *s: torch.randn(*s, dtype=torch.bfloat16) * 0.8)(B, Sq, D)),
            "k_cache": _w((lambda *s: torch.randn(*s, dtype=torch.bfloat16) * 1.6)(B, H, Sk, Dh)),
            "v_cache": _w((lambda *s: torch.randn(*s, dtype=torch.bfloat16) * 0.2)(B, H, Sk, Dh)),
            "wq": _w((lambda *s: torch.randn(*s, dtype=torch.bfloat16) * 1.6)(D, H * Dh) * (D ** -0.5)),
            "wo": _w((lambda *s: torch.randn(*s, dtype=torch.bfloat16) * 0.2)(H * Dh, D) * ((H * Dh) ** -0.5)),
        }
    _B_in = _B_setup()

    return {
        "A_x": _A_in["x"],
        "A_k_cache": _A_in["k_cache"],
        "A_v_cache": _A_in["v_cache"],
        "A_wq": _A_in["wq"],
        "A_wo": _A_in["wo"],
        "B_x": _B_in["x"],
        "B_k_cache": _B_in["k_cache"],
        "B_v_cache": _B_in["v_cache"],
        "B_wq": _B_in["wq"],
        "B_wo": _B_in["wo"],
    }

def reference(A_x, A_k_cache, A_v_cache, A_wq, A_wo, B_x, B_k_cache, B_v_cache, B_wq, B_wo):
    def _A_ref(x, k_cache, v_cache, wq, wo):
        B, Sq, D = x.shape
        H, Dh = 32, 128
        q = (lambda x, *d: x.permute(*d))((x @ wq).reshape(B, Sq, H, Dh), 0, 2, 1, 3)
        scores = torch.einsum("bhqd,bhkd->bhqk", q, k_cache) * (Dh ** -0.5)
        p = _softmax(scores, axis=-1)
        o = torch.einsum("bhqk,bhkd->bhqd", p, v_cache)
        return (lambda x, *d: x.permute(*d))(o, 0, 2, 1, 3).reshape(B, Sq, H * Dh) @ wo

    def _B_ref(x, k_cache, v_cache, wq, wo):
        B, Sq, D = x.shape
        H, Dh = 32, 128
        q = (lambda x, *d: x.permute(*d))((x @ wq).reshape(B, Sq, H, Dh), 0, 2, 1, 3)
        scores = torch.einsum("bhqd,bhkd->bhqk", q, k_cache) * (Dh ** -0.5)
        p = _softmax(scores, axis=-1)
        o = torch.einsum("bhqk,bhkd->bhqd", p, v_cache)
        return (lambda x, *d: x.permute(*d))(o, 0, 2, 1, 3).reshape(B, Sq, H * Dh) @ wo

    a = _A_ref(A_x, A_k_cache, A_v_cache, A_wq, A_wo)
    b = _B_ref(B_x, B_k_cache, B_v_cache, B_wq, B_wo)
    return torch.concatenate([a, b], axis=-1)
```

```python
import sys

KN = "concat_heads__mha_block_cached__mha_block_cached__decode_kernel"
HDR = open("concat_heads__mha_block_cached__mha_block_cached__decode.s.ref").read().split("; Override launch")[0]

LOG2E = 0x3FB8AA3B
SCALE = 0x3DB504F3
NST = 8
BOUND = 0x40000


def gen(S=8, thr="4444", pthr="4444", UT=16, polkv="nt", polw="nt", nw="-", il=32, sb=5, sh=14, lo=0,
        ipf=8, stamps=0, slp=16, warm=3, nox=0, late=2, pp=0, ackw=0, qdelay=0, noq=0, sq=1, sml=1, tst=0, rnd=1, ride=1, xfast=2, boost=1, fb=1, fbd=0, fbn=16, fthr='5555', fsl=16, fb2=0, fbd2=8, fbn2=16, sthr='3-3-', gfb=0, gsl=32, gz=0, st0=0, wst=0, wfb=1, qb=8, ypol='sc1', gpol='sc1', opol='', owarm=0, pk=1, pd=4, pko=1, tbar=0, bt=0, bs=8, thr2=None, m2=2, gh=0, gn=1, gb=0, gmask='0101', tlb=0, r2=0, wolate=3, slp2=4, wpr=508, wpa=None, wot=0, f3=0, f3thr='7777'):
    if gb: gh = gb
    if gh: gfb = 1; fb2 = 1
    L = []
    a = L.append
    NT = 32
    assert S in (4, 8)
    NP = S // 4
    NR = NT // 4
    OP, QB, OB, ML, FL, HF, QF, WQ, WO = 0, 4096, 4608, 6656, 6720, 6736, 6752, 8192, 40960
    PR = 6768
    ldsb = WO + 32768
    PGX = 0x1000
    MLX, OX, YX, QX, WSZ = 0x10000, 0x40000, 0x80000, 0x100000, 0x180000
    vLane, vOff, vT, vU = 0, 1, 2, 3
    vMask = 4
    def v4(r): return f"v[{r}:{r+3}]"
    def vm(n): return f"s_waitcnt vmcnt({min(n, 63)})"
    pA, pB = 8, 68
    sBr = 19
    sK, sW, sX, sWS, sOUT, sDBG = 28, 28, 32, 44, 48, 52
    sCnt, sOff, sL2E, sScale = 56, 57, 60, 61
    sSt = 80
    def srd(r): return f"s[{r}:{r+3}]"
    def stamp(i):
        if stamps: a(f"s_memrealtime s[{sSt+2*i}:{sSt+2*i+1}]")
    def setexec(m):
        if m == -1 or m <= 64: a(f"s_mov_b64 exec, {m}")
        else:
            a(f"s_mov_b32 exec_lo, {hex(m & 0xffffffff)}"); a(f"s_mov_b32 exec_hi, {hex(m >> 32)}")
    def put_stamps(idx):
        a("s_waitcnt lgkmcnt(0)")
        setexec(1)
        a(f"s_mul_i32 s3, s2, {8*NST}"); a("s_add_u32 s3, s3, 0x10000000"); a(f"v_mov_b32 v{vT}, s3")
        for i in idx:
            a(f"v_mov_b32 v8, s{sSt+2*i}"); a(f"v_mov_b32 v9, s{sSt+2*i+1}")
            a(f"buffer_store_dwordx2 v[8:9], v{vT}, {srd(sWS)}, 0 offen offset:{8*i}")
            a("s_nop 1")
    def mksrd(r, lo_, n):
        a(f"s_mov_b32 s{r}, s{lo_}"); a(f"s_mov_b32 s{r+1}, s{lo_+1}"); a(f"s_mov_b32 s{r+2}, {hex(n)}"); a(f"s_mov_b32 s{r+3}, 0x20000")
    def xswap(op, x, t):
        a(f"v_mov_b32 v{t}, v{x}"); a("s_nop 1"); a(f"v_permlane32_swap_b32 v{x}, v{t}"); a(f"{op} v{x}, v{x}, v{t}")
        a(f"v_mov_b32 v{t}, v{x}"); a("s_nop 1"); a(f"v_permlane16_swap_b32 v{x}, v{t}"); a(f"{op} v{x}, v{x}, v{t}")
    def masks():
        a(f"v_and_b32 v{vT}, 1, v{vLane}"); a(f"v_lshlrev_b32 v{vT}, 4, v{vT}")
        a(f"v_mov_b32 v{vU}, 0xffff"); a(f"v_lshlrev_b32 v{vT}, v{vT}, v{vU}")
        a(f"v_bfe_u32 v{vU}, v{vLane}, 1, 2")
        for j in range(4):
            a(f"v_cmp_eq_u32 vcc, {j}, v{vU}"); a("s_nop 1"); a(f"v_cndmask_b32 v{vMask+j}, 0, v{vT}, vcc")
    def dpp(ctrl, bank=0xf): return f"{ctrl} row_mask:0xf bank_mask:{hex(bank)}"
    def waitflags(lab, off, vz, tmp, want, sleep, extra=None):
        a(f"s_mov_b32 s{sCnt}, {hex(BOUND if sleep else BOUND * 16)}")
        a(f"{lab}:")
        a(f"ds_read_b128 {v4(tmp)}, v{vz} offset:{off}")
        n = extra() if extra else 0
        a(f"s_sub_u32 s{sCnt}, s{sCnt}, 1"); a("s_cbranch_scc1 L_end")
        a(f"s_waitcnt lgkmcnt({n})")
        a(f"v_min3_u32 v{tmp}, v{tmp}, v{tmp+1}, v{tmp+2}"); a(f"v_min_u32 v{tmp}, v{tmp}, v{tmp+3}")
        a("s_nop 0")
        a(f"v_readfirstlane_b32 s3, v{tmp}")
        a(f"s_cmp_ge_u32 s3, {want}")
        if sleep:
            a(f"s_cbranch_scc1 {lab}x"); a(f"s_sleep {sleep}"); a(f"s_branch {lab}"); a(f"{lab}x:")
        else:
            a(f"s_cbranch_scc0 {lab}")

    a(HDR.rstrip())
    a(f"; @launch grid=(256,1,1) block=(512,1,1) lds={ldsb}")
    a('.amdgcn_target "amdgcn-amd-amdhsa--gfx950"')
    a(".text"); a(f".globl {KN}"); a(".p2align 8"); a(f".type {KN},@function"); a(f"{KN}:")
    a("s_cmp_ge_u32 s2, 256")
    a("s_cbranch_scc1 L_end")
    if st0: stamp(0)
    a(f"s_load_dwordx8 s[{pA}:{pA+7}], s[0:1], 0")
    a(f"s_load_dwordx2 s[{pA+8}:{pA+9}], s[0:1], 32")
    a(f"s_load_dwordx8 s[{pB}:{pB+7}], s[0:1], 40")
    a(f"s_load_dwordx2 s[{pB+8}:{pB+9}], s[0:1], 72")
    a("s_load_dwordx4 s[20:23], s[0:1], 80")
    a("s_load_dwordx2 s[24:25], s[0:1], 96")
    if not st0: stamp(0)
    a(f"v_lshrrev_b32 v{vT}, 6, v0")
    a(f"v_and_b32 v{vLane}, 63, v0")
    a(f"v_readfirstlane_b32 s18, v{vT}")
    a("s_bfe_u32 s4, s2, 0x20003")
    a("s_bfe_u32 s6, s2, 0x10005")
    a("s_and_b32 s5, s2, 7"); a("s_lshl_b32 s5, s5, 2"); a("s_lshr_b32 s3, s2, 6"); a("s_add_u32 s5, s5, s3")
    a("s_and_b32 s7, s18, 3")
    a(f"s_mov_b32 s{sBr}, 0")
    if ipf:
        a(f"s_cmp_eq_u32 s18, {ipf - 1}"); a("s_cbranch_scc0 L_noipf")
        a("s_getpc_b64 s[40:41]")
        a("L_pc:")
        a(f"v_lshlrev_b32 v{vU}, 7, v{vLane}")
        a(f"v_cmp_gt_u32 vcc, L_end-L_pc, v{vU}"); a("s_mov_b64 exec, vcc")
        a(f"global_load_dword v250, v{vU}, s[40:41]")
        a(f"v_add_u32 v{vU}, 0x2000, v{vU}")
        a(f"v_cmp_gt_u32 vcc, L_end-L_pc, v{vU}"); a("s_mov_b64 exec, vcc")
        a("s_cbranch_execz L_ipf2")
        a(f"global_load_dword v251, v{vU}, s[40:41]")
        a("L_ipf2:")
        setexec(-1)
        a("L_noipf:")
    a("s_cmp_ge_u32 s18, 4")
    a("s_cbranch_scc0 L_helper")

    vQ = vAcc = 8
    vD, vY, vZ, vOPa = 12, 16, 18, 19
    vM, vL, vRc, vTr = 20, 21, 22, 23
    vR, vA, R0 = 24, 40, 56
    vQa, vFa, vZero = 184, 185, 186
    sVb, sKn, sRec, sHead, sUT = 32, 34, 62, 63, 58
    sC, sLm = 36, 40
    def ring(st, u): return R0 + st * 16 + 4 * u
    gran = il * 1024
    wrap = 0xfffff if il and not r2 else 0x7ffff
    tstep = 0x2000 if r2 else 0x4000
    a(f"s_lshl_b32 s{sHead}, s4, 5"); a(f"s_add_u32 s{sHead}, s{sHead}, s5")
    if sb:
        a(f"s_bfe_u32 s3, s{sHead}, {hex((sb << 16) | lo)}"); a(f"s_lshl_b32 s3, s3, {sh}")
        if il:
            lg = gran.bit_length() - 1
            a(f"s_and_b32 s{sOff}, s3, {hex(gran - 1)}"); a(f"s_lshr_b32 s3, s3, {lg}"); a(f"s_lshl_b32 s3, s3, {lg + 1}"); a(f"s_add_u32 s3, s3, s{sOff}")
    else: a("s_mov_b32 s3, 0")
    if r2: a(f"s_lshr_b32 s{sOff}, s7, 1"); a(f"s_lshl_b32 s{sOff}, s{sOff}, 10")
    else: a(f"s_lshl_b32 s{sOff}, s7, 10")
    a(f"s_add_u32 s3, s3, s{sOff}")
    a(f"v_lshl_add_u32 v{vOff}, v{vLane}, 4, s3")
    a(f"s_lshl_b32 s{sHead}, s{sHead}, 20"); a(f"s_mul_i32 s3, s6, {gran if il and not r2 else 0x80000}"); a(f"s_add_u32 s{sHead}, s{sHead}, s3")
    if r2: a("s_and_b32 s3, s7, 1"); a(f"s_mul_i32 s3, s3, {gran}"); a(f"s_add_u32 s{sHead}, s{sHead}, s3")
    for u in range(1, 4): a(f"s_movk_i32 s{sC+u-1}, {hex((2048 if r2 else 4096)*u)}")
    a(f"s_mov_b32 s{sK+2}, {hex(wrap + 1 - gran)}"); a(f"s_mov_b32 s{sK+3}, 0x20000")
    a("s_waitcnt lgkmcnt(0)")
    a(f"s_add_u32 s{sK}, s{pA+2}, s{sHead}"); a(f"s_addc_u32 s{sK+1}, s{pA+3}, 0")
    def group(st, pat):
        for u in range(4):
            if pat[u] != "-": a(vm(int(pat[u], 36)))
            a(f"buffer_load_dwordx4 {v4(ring(st, u))}, v{vOff}, {srd(sK)}, {'0' if u == 0 else f's{sC+u-1}'} offen {polkv}")
        a(f"v_add_u32 v{vOff}, {hex(tstep)}, v{vOff}")
        if il:
            a(f"v_and_b32 v{vU}, {hex(gran)}, v{vOff}"); a(f"v_add_u32 v{vOff}, v{vU}, v{vOff}")
        a(f"v_and_b32 v{vOff}, {hex(wrap)}, v{vOff}")
    vOne, vLv = 187, 188
    def progress():
        if fb:
            setexec(1)
            a(f"ds_add_u32 v{vZero}, v{vOne} offset:{PR}")
            if wfb: a(f"ds_read_b64 v[{vLv}:{vLv+1}], v{vZero} offset:{PR}"); a(f"s_add_u32 s59, s59, 4")
            else: a(f"ds_read_b32 v{vLv}, v{vZero} offset:{PR+4}")
            setexec(-1)
    def dgroup(st, lab):
        if not fb:
            group(st, thr); return
        if wfb:
            a("s_waitcnt lgkmcnt(0)"); a(f"v_readfirstlane_b32 s3, v{vLv}"); a(f"v_readfirstlane_b32 s39, v{vLv+1}")
            a("s_sub_i32 s3, s3, s59"); a(f"s_cmp_ge_i32 s3, {wfb}"); a("s_cselect_b32 s3, 1, 0" if f3 else "s_cselect_b32 s3, 1, s39")
            if f3: a("s_max_u32 s3, s3, s39")
        else: a("s_waitcnt lgkmcnt(0)"); a(f"v_readfirstlane_b32 s3, v{vLv}")
        if fb2 or f3: a("s_cmp_eq_u32 s3, 2"); a("s_cselect_b64 vcc, -1, 0")
        a("s_cmp_ge_u32 s3, 1" if f3 else "s_cmp_eq_u32 s3, 1")
        for u in range(4):
            if fb2 and not gb and sthr[u] != "-":
                a(f"s_cbranch_vccz {lab}_s{u}"); a(vm(int(sthr[u], 36))); a(f"{lab}_s{u}:")
            a(f"s_cbranch_scc1 {lab}_{u}")
            if gb and gmask[u] == "1": a(f"s_cbranch_vccnz {lab}_{u}")
            a(vm(int((thr2 if thr2 and st % m2 == 1 else thr)[u], 36)))
            a(f"{lab}_{u}:")
            if f3: a(f"s_cbranch_vccnz {lab}_f{u}")
            a(vm(int(fthr[u], 36)))
            if f3: a(f"{lab}_f{u}:"); a(vm(int(f3thr[u], 36)))
            a(f"buffer_load_dwordx4 {v4(ring(st, u))}, v{vOff}, {srd(sK)}, {'0' if u == 0 else f's{sC+u-1}'} offen {polkv}")
        a(f"v_add_u32 v{vOff}, {hex(tstep)}, v{vOff}")
        if il:
            a(f"v_and_b32 v{vU}, {hex(gran)}, v{vOff}"); a(f"v_add_u32 v{vOff}, v{vU}, v{vOff}")
        a(f"v_and_b32 v{vOff}, {hex(wrap)}, v{vOff}")
    if st0: stamp(1)
    for i in range(S):
        group(i, pthr)
        if i == 0: a("s_barrier")
        if st0 and i == 0: a(vm(3)); stamp(3)
    a(f"s_add_u32 s{sVb}, s{pA+4}, s{sHead}"); a(f"s_addc_u32 s{sVb+1}, s{pA+5}, 0")
    a(f"s_add_u32 s{sKn}, s{pB+2}, s{sHead}"); a(f"s_addc_u32 s{sKn+1}, s{pB+3}, 0")
    a(f"s_mov_b32 s{sRec}, s{sK+2}")
    a(f"s_mov_b32 s{sUT}, {NT - boost}")
    masks()
    for j in range(4):
        a(f"s_mov_b32 s{sLm+2*j}, {hex(0x11111111 << j)}"); a(f"s_mov_b32 s{sLm+2*j+1}, {hex(0x11111111 << j)}")
    a(f"s_mov_b32 s{sL2E}, {hex(LOG2E)}"); a(f"s_mov_b32 s{sScale}, {hex(SCALE)}")
    a(f"v_and_b32 v{vQa}, 15, v{vLane}")
    a("s_lshl_b32 s3, s7, 9")
    a(f"v_lshrrev_b32 v{vU}, 4, v{vLane}")
    a(f"v_lshlrev_b32 v{vOPa}, 5, v{vQa}")
    a(f"v_lshl_add_u32 v{vOPa}, v{vU}, 4, v{vOPa}")
    a(f"v_add_u32 v{vOPa}, s3, v{vOPa}")
    a(f"v_lshlrev_b32 v{vQa}, 4, v{vQa}")
    a("s_lshl_b32 s3, s7, 2"); a(f"v_mov_b32 v{vFa}, s3"); a(f"v_mov_b32 v{vZero}, 0")
    if fb: a(f"v_mov_b32 v{vOne}, 1"); a("s_mov_b32 s59, 0")
    def setflag(k):
        a(f"s_mul_i32 s3, s{sBr}, 3"); a(f"s_add_u32 s3, s3, {k}"); a(f"v_mov_b32 v{vRc}, s3")
        setexec(1)
        a(f"ds_write_b32 v{vFa}, v{vRc} offset:{FL}")
        setexec(-1)
    def trace(base):
        if stamps:
            a("s_memrealtime s[96:97]"); a("s_waitcnt lgkmcnt(0)")
            a(f"s_lshr_b32 s3, s{sCnt}, {S.bit_length()-1}"); a(f"s_mul_i32 s97, s{sBr}, {2*NT//S}"); a("s_add_u32 s3, s3, s97"); a(f"s_add_u32 m0, s3, {base}")
            a(f"v_writelane_b32 v{vTr}, s96, m0")
    a("L_branch:")
    def qread():
        a(f"ds_read_b128 {v4(vQ)}, v{vQa} offset:{QB}")
        return 1
    a(f"s_add_u32 s{sOff}, s{sBr}, 1")
    waitflags("L_qw", QF, vZero, vD, f"s{sOff}", 0, qread)
    a(f"v_mov_b32 v{vM}, 0xff800000")
    a(f"s_mov_b32 s{sCnt}, 0")
    a("s_waitcnt lgkmcnt(0)")
    if stamps:
        if not st0: a(f"s_cmp_eq_u32 s{sBr}, 0"); a("s_cbranch_scc0 L_s1"); stamp(1); a("L_s1:")
    a("L_kloop:")
    trace(0)
    a(f"s_cmp_eq_u32 s{sCnt}, {NT - S}")
    a("s_cbranch_scc0 L_k1")
    a(f"s_mov_b32 s{sK}, s{sVb}"); a(f"s_mov_b32 s{sK+1}, s{sVb+1}")
    a("L_k1:")
    for i in range(NR - NP): a(f"v_mov_b32 v{vR+i}, v{vR+i+NP}")
    for st in range(S):
        j = st & 3
        progress()
        a(vm(4 * S - 4))
        for jj in range(4):
            for u in range(4):
                a(f"v_dot2_f32_bf16 v{vD+u}, v{ring(st,u)+jj}, v{vQ+jj}, {'0' if jj == 0 else f'v{vD+u}'}")
        if boost and st >= S - boost:
            a(f"s_cmp_eq_u32 s{sCnt}, {NT - S}"); a(f"s_cbranch_scc1 L_kb{st}")
            dgroup(st, f"L_kd{st}"); a(f"s_branch L_kj{st}")
            a(f"L_kb{st}:"); group(st, "----"); a(f"L_kj{st}:")
        else: dgroup(st, f"L_kd{st}")
        a(f"v_add_f32_dpp v{vY}, v{vD}, v{vD} {dpp('row_ror:8', 0x3)}")
        a(f"v_add_f32_dpp v{vY+1}, v{vD+2}, v{vD+2} {dpp('row_ror:8', 0x3)}")
        a(f"v_add_f32_dpp v{vY}, v{vD+1}, v{vD+1} {dpp('row_ror:8', 0xc)}")
        a(f"v_add_f32_dpp v{vY+1}, v{vD+3}, v{vD+3} {dpp('row_ror:8', 0xc)}")
        a("s_nop 0")
        a(f"v_add_f32_dpp v{vZ}, v{vY}, v{vY} {dpp('row_half_mirror', 0x5)}")
        a(f"v_add_f32_dpp v{vZ}, v{vY+1}, v{vY+1} {dpp('row_half_mirror', 0xa)}")
        a("s_nop 1")
        a(f"v_add_f32_dpp v{vZ}, v{vZ}, v{vZ} {dpp('quad_perm:[1,0,3,2]')}")
        a("s_nop 1")
        a(f"v_add_f32_dpp v{vZ}, v{vZ}, v{vZ} {dpp('quad_perm:[2,3,0,1]')}")
        a(f"v_cndmask_b32 v{vRc}, v{vRc}, v{vZ}, s[{sLm+2*j}:{sLm+2*j+1}]")
        if j == 3:
            dst = vR + NR - NP + st // 4
            a(f"v_cvt_pk_bf16_f32 v{vT}, v{vRc}, v{vRc}")
            a(f"v_lshlrev_b32 v{vT}, 16, v{vT}")
            a(f"v_mul_f32 v{vT}, s{sScale}, v{vT}")
            a(f"v_cvt_pk_bf16_f32 v{vT}, v{vT}, v{vT}")
            a(f"v_lshlrev_b32 v{dst}, 16, v{vT}")
            a(f"v_max_f32 v{vM}, v{vM}, v{dst}")
    a(f"s_add_u32 s{sCnt}, s{sCnt}, {S}")
    a(f"s_cmp_lt_u32 s{sCnt}, {NT}"); a("s_cbranch_scc1 L_kloop")
    for sh_ in (8, 4, 2, 1):
        a("s_nop 1" if sh_ != 8 else "s_nop 0")
        a(f"v_max_f32_dpp v{vM}, v{vM}, v{vM} {dpp(f'row_ror:{sh_}')}")
    xswap("v_max_f32", vM, vT)
    a(f"v_mul_f32 v{vM}, s{sL2E}, v{vM}")
    a(f"v_max_f32 v{vM}, 0xff7fffff, v{vM}")
    for k in range(NR): a(f"v_fma_f32 v{vR+k}, v{vR+k}, s{sL2E}, -v{vM}")
    for k in range(NR): a(f"v_exp_f32 v{vR+k}, v{vR+k}")
    for r in range(4): a(f"v_mov_b32 v{vAcc+r}, 0")
    for k in range(4): a(f"v_add_f32 v{vD+k}, v{vR+k}, v{vR+4+k}")
    for k in range(NR): a(f"v_cvt_pk_bf16_f32 v{vR+k}, v{vR+k}, v{vR+k}")
    a(f"v_add_f32 v{vD}, v{vD}, v{vD+1}"); a(f"v_add_f32 v{vD+2}, v{vD+2}, v{vD+3}")
    a(f"v_add_f32 v{vL}, v{vD}, v{vD+2}")
    for sh_ in (8, 4, 2, 1):
        a("s_nop 1")
        a(f"v_add_f32_dpp v{vL}, v{vL}, v{vL} {dpp(f'row_ror:{sh_}')}")
    xswap("v_add_f32", vL, vT)
    a(f"s_lshl_b32 s3, s{sBr}, 5"); a(f"v_lshl_add_u32 v{vT}, v{vFa}, 1, s3")
    setexec(1)
    a(f"ds_write_b64 v{vT}, v[{vM}:{vM+1}] offset:{ML}")
    setflag(1)
    a(f"s_mov_b32 s{sCnt}, 0")
    bank = (0, 2, 1, 3)
    a("L_vloop:")
    trace(NT // S)
    a(f"s_cmp_eq_u32 s{sCnt}, {NT - S}")
    a("s_cbranch_scc0 L_v1")
    a(f"s_mov_b32 s{sK}, s{sKn}"); a(f"s_mov_b32 s{sK+1}, s{sKn+1}"); a(f"s_mov_b32 s{sK+2}, s{sRec}")
    setflag(2)
    a("L_v1:")
    for st in range(S):
        j = st & 3
        P = vR + st // 4
        progress()
        for r in range(4):
            for jj in range(4):
                a(f"v_and_b32_dpp v{vA+4*r+jj}, v{P}, v{vMask+jj} {dpp(f'row_newbcast:{4*bank[r]+j}')}")
        a(vm(4 * S - 4))
        for r in range(4):
            a(f"v_mfma_f32_16x16x32_bf16 {v4(vAcc)}, {v4(vA+4*r)}, {v4(ring(st,r))}, {v4(vAcc)}")
        a(f"s_add_u32 s3, s{sCnt}, {st}"); a(f"s_cmp_lt_u32 s3, s{sUT}")
        a(f"s_cbranch_scc0 L_v{st}n")
        dgroup(st, f"L_vd{st}")
        a(f"s_branch L_v{st}j")
        a(f"L_v{st}n:")
        group(st, "----")
        a(f"L_v{st}j:")
    a(f"s_add_u32 s{sCnt}, s{sCnt}, {S}")
    a(f"s_cmp_lt_u32 s{sCnt}, {NT}"); a("s_cbranch_scc0 L_vdone")
    for i in range(NR - NP): a(f"v_mov_b32 v{vR+i}, v{vR+i+NP}")
    a("s_branch L_vloop")
    a("L_vdone:")
    setexec(0xffffffff)
    a(f"ds_write_b128 v{vOPa}, {v4(vAcc)} offset:{OP}")
    setflag(3)
    a(f"s_cmp_eq_u32 s{sBr}, 0")
    a("s_cbranch_scc0 L_sdone")
    if stamps and not st0: stamp(3)
    a(f"s_mov_b32 s{sBr}, 1")
    a(f"s_add_u32 s{sVb}, s{pB+4}, s{sHead}"); a(f"s_addc_u32 s{sVb+1}, s{pB+5}, 0")
    a(f"s_mov_b32 s{sRec}, 0"); a(f"s_mov_b32 s{sUT}, {UT}")
    a(f"v_add_u32 v{vOPa}, 2048, v{vOPa}"); a(f"v_add_u32 v{vQa}, 256, v{vQa}")
    a("s_waitcnt lgkmcnt(0)")
    a("s_branch L_branch")
    a("L_sdone:")
    if stamps:
        stamp(2)
        mksrd(sWS, 24, 0x20000000)
        if wst:
            a("s_waitcnt lgkmcnt(0)")
            a("s_lshl_b32 s3, s2, 2"); a("s_add_u32 s3, s3, s7"); a("s_lshl_b32 s3, s3, 2"); a("s_add_u32 s3, s3, 0x12000000")
            a(f"v_mov_b32 v{vT}, s3"); a(f"v_mov_b32 v8, s{sSt+4}")
            setexec(1)
            a(f"buffer_store_dword v8, v{vT}, {srd(sWS)}, 0 offen")
            setexec(-1)
        a("s_cmp_lg_u32 s7, 0"); a("s_cbranch_scc1 L_end")
        a("s_getreg_b32 s3, hwreg(HW_REG_HW_ID)"); a(f"v_writelane_b32 v{vTr}, s3, 16")
        a("s_lshl_b32 s3, s2, 7"); a("s_add_u32 s3, s3, 0x11000000"); a(f"v_lshl_add_u32 v{vT}, v{vLane}, 2, s3")
        setexec(0xffffffff)
        a(f"buffer_store_dword v{vTr}, v{vT}, {srd(sWS)}, 0 offen")
        put_stamps((0, 1, 2, 3))
    a("s_endpgm")

    vG, vC, vNm = 4, 5, 7
    vTag = 176
    TX = (0, 0x3ff, 0x155, 0x2aa)
    vXa = 8
    vB = 40
    vD = 72
    vGr = 80
    vLd = 84
    vTq, vTo, vQs, vQg, vQr, vHf, vZero, vXo, vWq, vWo = 92, 93, 94, 95, 96, 97, 98, 99, 100, 101
    vMx, vOs, vOg, vOw, vOf, vYs, vGa, vOut, vOr = 102, 103, 104, 105, 106, 107, 108, 109, 110
    vT64 = 112
    mlr = 116
    vE = 124
    vOA = 140
    vP0 = 144
    sS, s4k = 26, 36
    def sethf(k):
        a(f"v_mov_b32 v{vU}, {k}")
        setexec(1)
        a(f"ds_write_b32 v{vHf}, v{vU} offset:{HF}")
        setexec(-1)
    a("L_helper:")
    a("s_lshl_b32 s3, s7, 2"); a(f"v_mov_b32 v{vHf}, s3"); a(f"v_mov_b32 v{vZero}, 0")
    setexec(1)
    for off in (FL, HF, QF) + ((PR,) if fb else ()): a(f"ds_write_b32 v{vHf}, v{vZero} offset:{off}")
    setexec(-1)
    a(f"s_bfe_u32 s{sS}, s2, 0x30003")
    a(f"v_lshrrev_b32 v{vG}, 4, v{vLane}")
    a(f"v_and_b32 v{vC}, 15, v{vLane}")
    a("s_lshl_b32 s3, s4, 8")
    a(f"v_lshrrev_b32 v{vT}, 2, v{vC}"); a(f"v_lshlrev_b32 v{vT}, 10, v{vT}"); a(f"v_lshl_add_u32 v{vT}, v{vG}, 4, v{vT}"); a(f"v_add_u32 v{vXo}, s3, v{vT}")
    a("s_lshl_b32 s3, s4, 2"); a("s_add_u32 s3, s3, s7"); a("s_lshl_b32 s3, s3, 18"); a(f"s_lshl_b32 s{sOff}, s5, 8"); a(f"s_add_u32 s3, s3, s{sOff}")
    a(f"s_lshl_b32 s{sOff}, s6, 7"); a(f"s_add_u32 s3, s3, s{sOff}")
    a(f"v_lshrrev_b32 v{vT}, 3, v{vLane}"); a(f"v_and_b32 v{vU}, 7, v{vLane}"); a(f"v_lshlrev_b32 v{vU}, 4, v{vU}")
    a(f"v_lshl_add_u32 v{vWq}, v{vT}, 13, v{vU}"); a(f"v_add_u32 v{vWq}, s3, v{vWq}")
    a("s_lshl_b32 s3, s5, 17"); a(f"s_lshl_b32 s{sOff}, s7, 15"); a(f"s_add_u32 s3, s3, s{sOff}"); a(f"s_lshl_b32 s{sOff}, s{sS}, 7"); a(f"s_add_u32 s3, s3, s{sOff}")
    a(f"v_lshl_add_u32 v{vWo}, v{vT}, 10, v{vU}"); a(f"v_add_u32 v{vWo}, s3, v{vWo}")
    a("s_lshl_b32 s3, s5, 13"); a(f"s_add_u32 s38, s3, {hex(QX)}")
    a(f"s_lshl_b32 s3, s{sS}, 2"); a("s_add_u32 s3, s3, s7"); a("s_lshl_b32 s3, s3, 8"); a("s_add_u32 s3, s3, s38")
    a(f"v_lshl_add_u32 v{vQs}, v{vLane}, 2, s3")
    sLd = 39
    a(f"s_lshl_b32 s{sLd}, s7, 12")
    a(f"s_mov_b32 s{sX+2}, 0x1000"); a(f"s_mov_b32 s{sX+3}, 0x20000"); a(f"s_mov_b32 s{sW+2}, 0x400000"); a(f"s_mov_b32 s{sW+3}, 0x20000")
    a("s_waitcnt lgkmcnt(0)")
    a("s_load_dword s37, s[24:25], 0")
    if tlb:
        a("s_lshl_b32 s64, s4, 5"); a("s_add_u32 s64, s64, s5"); a("s_lshl_b32 s64, s64, 20")
        if tlb == 1:
            for p in (pA + 4, pB + 2, pB + 4): a(f"s_load_dword s65, s[{p}:{p+1}], s64")
    def dma(p, voff, stride, dst, pat):
        a(f"s_mov_b32 s{sW}, s{p}"); a(f"s_mov_b32 s{sW+1}, s{p+1}")
        for t in range(4):
            a(f"s_add_u32 m0, s{sLd}, {dst + 1024*t}"); a(f"s_mov_b32 s3, {stride*t}")
            if pat != "-": a(vm(int(pat)))
            a(f"buffer_load_dwordx4 v{voff}, {srd(sW)}, s3 offen {polw} lds")
    def xload(br, p):
        a(f"s_mov_b32 s{sX}, s{p}"); a(f"s_mov_b32 s{sX+1}, s{p+1}")
        for u in range(4):
            a(f"buffer_load_dwordx4 {v4(vXa+16*br+4*u)}, v{vXo}, {srd(sX)}, 0 offen offset:{64*u}")
    def rest():
        dma(pB + 6, vWq, 0x10000, WQ + 16384, nw)
        xload(1, pB)
        if not wolate:
            for br, p in enumerate((pA, pB)): dma(p + 8, vWo, 8192, WO + 16384*br, nw)
        elif wpa == 0: dma(pA + 8, vWo, 8192, WO, nw)
    if wolate: a(f"s_mov_b32 s52, s{pA+8}"); a(f"s_mov_b32 s53, s{pA+9}")
    dma(pA + 6, vWq, 0x10000, WQ, "-")
    xload(0, pA)
    mksrd(sWS, 24, 0x20000000 if stamps else WSZ)
    nafter = 0
    if warm & 2:
        a("s_mov_b32 s3, 0x40000")
        setexec(0x100000001)
        a(f"buffer_load_dword v200, v{vQs}, {srd(sWS)}, 0 offen sc1")
        a(f"buffer_load_dword v201, v{vQs}, {srd(sWS)}, s3 offen sc1")
        setexec(-1)
        nafter += 2
    a("s_barrier")
    if not late: rest(); nafter += (12 if wpa == 0 else 8) if wolate else 16
    a(f"v_bfe_u32 v{vT}, v{vLane}, 2, 2"); a(f"v_lshl_add_u32 v{vT}, v{vG}, 3, v{vT}"); a(f"v_and_b32 v{vU}, 3, v{vLane}"); a(f"v_lshlrev_b32 v{vU}, 3, v{vU}")
    a("s_lshl_b32 s3, s7, 5"); a(f"s_add_u32 s3, s3, {WQ}"); a(f"v_lshl_add_u32 v{vTq}, v{vT}, 7, v{vU}"); a(f"v_add_u32 v{vTq}, s3, v{vTq}")
    a(f"v_add_u32 v{vTo}, {WO - WQ}, v{vTq}")
    a("s_lshl_b32 s3, s7, 8"); a(f"v_lshl_add_u32 v{vOw}, v{vLane}, 2, s3")
    a(f"v_lshlrev_b32 v{vOr}, 3, v{vLane}")
    a(f"s_lshl_b32 s3, s4, 6"); a("s_add_u32 s3, s3, s38"); a("s_add_u32 s62, s24, s3"); a("s_addc_u32 s63, s25, 0")
    a(f"v_and_b32 v{vU}, 3, v{vLane}"); a(f"v_lshl_add_u32 v{vQg}, v{vU}, 4, s3")
    a(f"v_bfe_u32 v{vU}, v{vLane}, 2, 2"); a(f"v_lshl_add_u32 v{vQg}, v{vU}, 8, v{vQg}")
    a(f"v_bfe_u32 v{vU}, v{vLane}, 4, 1"); a(f"v_lshl_add_u32 v{vQg}, v{vU}, 12, v{vQg}")
    a(f"v_lshrrev_b32 v{vU}, 5, v{vLane}"); a(f"v_lshl_add_u32 v{vQg}, v{vU}, 10, v{vQg}")
    a(f"v_and_b32 v{vT}, 31, v{vLane}"); a(f"v_lshlrev_b32 v{vT}, 3, v{vT}"); a(f"v_lshl_add_u32 v{vQr}, v{vU}, 2, v{vT}")
    a("s_waitcnt lgkmcnt(0)")
    a("s_add_u32 s37, s37, 1"); a(f"v_mov_b32 v{vT64}, s37")
    tb = [qb]
    def settag():
        m = (1 << tb[0]) - 1
        a(f"s_and_b32 s3, s37, {hex(m)}"); a(f"v_mov_b32 v{vTag}, s3"); a(f"v_mov_b32 v{vNm}, {hex(0xffffffff ^ m)}")
        for k in range(1, 4): a(f"v_xor_b32 v{vTag+k}, {hex(TX[k] & m)}, v{vTag}")
    settag()
    def tagged(dst, src, r=rnd):
        if r: a(f"v_add_u32 v{dst}, {hex(1 << (tb[0] - 1))}, v{src}"); src = dst
        a(f"v_and_or_b32 v{dst}, v{src}, v{vNm}, v{vTag + dst - vGr}")
    def badtag(r, vcc):
        a(f"v_xor_b32 v{vE}, v{r}, v{vTag}"); a(f"v_xor_b32 v{vE+1}, v{r+2}, v{vTag+2}")
        a(f"v_bitop3_b32 v{vE}, v{r+1}, v{vTag+1}, v{vE} bitop3:0xbe")
        a(f"v_bitop3_b32 v{vE+1}, v{r+3}, v{vTag+3}, v{vE+1} bitop3:0xbe")
        a(f"v_bitop3_b32 v{vE}, v{vE}, v{vE+1}, v{vNm} bitop3:0x54")
        a(f"v_cmp_ne_u32 {vcc}, 0, v{vE}")
    def strip_add(src):
        for r in range(8): a(f"v_and_b32 v{src+r}, v{vNm}, v{src+r}")
        for r in range(4): a(f"v_add_f32 v{vLd+r}, v{src+r}, v{src+4+r}")
    def poll2(lab, addr, second, piped=0, pol="sc1", depth=1, back=0):
        def issue(r):
            a(f"buffer_load_dwordx4 {v4(r)}, v{addr}, {srd(sWS)}, 0 offen {pol}")
            a(f"buffer_load_dwordx4 {v4(r+4)}, v{addr}, {srd(sWS)}, {second} {pol}")
        a(f"s_mov_b32 s{sCnt}, {hex(BOUND)}")
        if depth > 1:
            r = vP0
            for _ in range(depth - 1): issue(r); a(f"s_sleep {pd}")
            a(f"{lab}:")
            issue(r)
            a(f"s_sub_u32 s{sCnt}, s{sCnt}, 1"); a("s_cbranch_scc1 L_end")
            a(f"s_waitcnt vmcnt({2 * depth - 2})")
            badtag(r, "s[40:41]")
            badtag(r + 4, "vcc")
            a("s_or_b64 vcc, vcc, s[40:41]")
            a("s_and_b64 exec, exec, vcc")
            a(f"s_cbranch_execnz {lab}")
            setexec(-1)
            for i in range(8): a(f"v_and_b32 v{vLd+i}, v{vNm}, v{r+i}")
            for i in range(4): a(f"v_add_f32 v{vLd+i}, v{vLd+i}, v{vLd+4+i}")
            return
        if not piped:
            a(f"{lab}:")
            issue(vLd)
            a(f"s_sub_u32 s{sCnt}, s{sCnt}, 1"); a("s_cbranch_scc1 L_end")
            a("s_waitcnt vmcnt(1)")
            badtag(vLd, "s[40:41]")
            a("s_waitcnt vmcnt(0)")
            badtag(vLd + 4, "vcc")
            a("s_or_b64 vcc, vcc, s[40:41]")
            a("s_and_b64 exec, exec, vcc")
            if back:
                a(f"s_cbranch_execz {lab}x"); a("s_bcnt1_i32_b64 s3, exec"); a(f"s_cmp_gt_u32 s3, {back}"); a(f"s_cbranch_scc0 {lab}")
                a(f"s_sleep {bs}"); a(f"s_branch {lab}"); a(f"{lab}x:")
            elif not nox: a(f"s_cbranch_execnz {lab}")
            setexec(-1)
            strip_add(vLd)
            return
        sets = (vP0, vP0 + 8)
        issue(sets[0]); a(f"s_sleep {piped}"); issue(sets[1])
        a(f"{lab}:")
        for i, r in enumerate(sets):
            a("s_waitcnt vmcnt(3)")
            badtag(r, "s[40:41]")
            a("s_waitcnt vmcnt(2)")
            badtag(r + 4, "vcc")
            a("s_or_b64 vcc, vcc, s[40:41]")
            a(f"s_cbranch_vccz {lab}ok{i}")
            issue(r)
        a(f"s_sub_u32 s{sCnt}, s{sCnt}, 1"); a(f"s_cbranch_scc0 {lab}")
        a("s_endpgm")
        a(f"{lab}ok1:")
        strip_add(sets[1])
        a(f"s_branch {lab}x")
        a(f"{lab}ok0:")
        strip_add(sets[0])
        a(f"{lab}x:")
    def qproj(br):
        if br == 0:
            a(vm(nafter))
            sethf(1)
        waitflags(f"L_q{br}", HF, vZero, vE, str(br + 1), 0)
        for u in range(4):
            for hh in range(2):
                r = vB + 4*u + 2*hh
                a(f"ds_read_b64_tr_b16 v[{r}:{r+1}], v{vTq} offset:{16384*br + 4096*u + 512*hh}")
        for u in range(4):
            a(f"s_waitcnt lgkmcnt({6 - 2*u})")
            a(f"v_mfma_f32_16x16x32_bf16 {v4(vD)}, {v4(vXa+16*br+4*u)}, {v4(vB+4*u)}, {'0' if u == 0 else v4(vD)}")
        a("s_nop 7")
        for r in range(1, 4): a(f"v_mov_b32_dpp v{vGr+r}, v{vD} {dpp(f'quad_perm:[{r},{r},{r},{r}]')}")
        tagged(vGr, vD)
        for r in range(1, 4): tagged(vGr + r, vGr + r)
        setexec(0x1111111111111111)
        a(f"buffer_store_dwordx4 {v4(vGr)}, v{vQs}, {srd(sWS)}, 0 offen sc1")
        setexec(-1)
        if br == 0:
            if not tst: stamp(6)
            if late == 1: rest()
        a("s_cmp_lg_u32 s7, 0"); a(f"s_cbranch_scc1 L_qx{br}")
        if ackw: a(vm(0))
        if qdelay: a(f"s_sleep {qdelay}")
        if sq:
            a(f"s_mov_b32 s{sCnt}, {hex(BOUND)}")
            a(f"L_sq{br}:")
            tr = (64, 65, 66, 67, 78, 79, 42, 43)
            for i in range(8): a(f"s_load_dword s{tr[i]}, s[62:63], {hex(0x40000*br + 1024*i + 768)} glc")
            a(f"s_sub_u32 s{sCnt}, s{sCnt}, 1"); a("s_cbranch_scc1 L_end")
            a("s_waitcnt lgkmcnt(0)")
            for i in range(8): a(f"s_xor_b32 s{tr[i]}, s{tr[i]}, s37")
            for i in range(1, 8): a(f"s_or_b32 s64, s64, s{tr[i]}")
            a(f"s_and_b32 s64, s64, {hex((1 << qb) - 1)}")
            a(f"s_cbranch_scc1 L_sq{br}")
        if not noq: poll2(f"L_qp{br}", vQg, "0 offen offset:2048")
        a("s_nop 0")
        a(f"v_permlane32_swap_b32 v{vLd}, v{vLd+2}"); a(f"v_permlane32_swap_b32 v{vLd+1}, v{vLd+3}")
        a(f"v_add_f32 v{vLd}, v{vLd}, v{vLd+2}"); a(f"v_add_f32 v{vLd+1}, v{vLd+1}, v{vLd+3}")
        a(f"v_cvt_pk_bf16_f32 v{vLd}, v{vLd}, v{vLd+1}")
        a(f"v_mov_b32 v{vU}, {br + 1}")
        a(f"ds_write_b32 v{vQr}, v{vLd} offset:{QB + 256*br}")
        setexec(15)
        a(f"ds_write_b32 v{vOw}, v{vU} offset:{QF}")
        setexec(-1)
        if br == 0 and not tst: stamp(4)
        a(f"L_qx{br}:")
        if br == 0:
            if late == 2: rest()
            a(f"v_add_u32 v{vQs}, 0x40000, v{vQs}"); a(f"v_add_u32 v{vQg}, 0x40000, v{vQg}")
            a(vm(0))
            sethf(2)
    qproj(0)
    mksrd(sOUT, 20, 0x2000)
    a(f"s_movk_i32 s{s4k}, 0x1000")
    a("s_lshl_b32 s3, s5, 3"); a(f"s_add_u32 s{sOff}, s3, s{sS}"); a("s_add_u32 s3, s3, s7")
    a("s_lshl_b32 s3, s3, 10"); a(f"s_add_u32 s3, s3, {hex(OX)}"); a(f"v_lshl_add_u32 v{vOg}, v{vLane}, 4, s3")
    a(f"s_lshl_b32 s3, s{sOff}, 10"); a(f"s_add_u32 s3, s3, {hex(OX)}"); a(f"v_lshl_add_u32 v{vOs}, v{vLane}, 4, s3")
    sMx = 27
    a(f"s_lshl_b32 s3, s{sOff}, 8"); a(f"s_add_u32 s{sMx}, s3, {hex(MLX)}"); a(f"v_mov_b32 v{vMx}, s{sMx}")
    a(f"v_lshrrev_b32 v{vT}, 2, v{vC}"); a(f"v_lshlrev_b32 v{vT}, 8, v{vT}"); a(f"v_lshl_add_u32 v{vOf}, v{vG}, 4, v{vT}")
    a(f"s_lshl_b32 s3, s{sOff}, 2"); a("s_add_u32 s3, s3, s7"); a("s_lshl_b32 s3, s3, 9"); a(f"s_add_u32 s3, s3, {hex(YX)}")
    a(f"v_lshl_add_u32 v{vYs}, v{vC}, 4, s3"); a(f"v_lshl_add_u32 v{vYs}, v{vG}, 7, v{vYs}")
    a("s_lshl_b32 s3, s5, 2"); a("s_add_u32 s3, s3, s4"); a("s_lshl_b32 s3, s3, 1"); a("s_add_u32 s3, s3, s6"); a("s_lshl_b32 s3, s3, 6"); a(f"s_add_u32 s3, s3, {hex(YX)}")
    a(f"v_lshrrev_b32 v{vT}, 2, v{vLane}"); a(f"v_and_b32 v{vU}, 3, v{vLane}")
    a(f"v_lshl_add_u32 v{vGa}, v{vU}, 4, s3"); a(f"v_lshl_add_u32 v{vGa}, v{vT}, 14, v{vGa}")
    a("s_lshl_b32 s3, s4, 6"); a("s_add_u32 s3, s3, s5"); a("s_lshl_b32 s3, s3, 2"); a("s_add_u32 s3, s3, s6"); a("s_lshl_b32 s3, s3, 3")
    a(f"v_lshl_add_u32 v{vOut}, v{vU}, 1, s3"); a(f"v_and_b32 v{vU}, 1, v{vT}"); a(f"v_lshl_add_u32 v{vOut}, v{vU}, 10, v{vOut}")
    a(f"v_bfe_u32 v{vU}, v{vLane}, 3, 1"); a(f"v_lshl_add_u32 v{vOut}, v{vU}, 4, v{vOut}")
    a("s_mov_b32 s38, 0x40000")
    qproj(1)
    if qb != 10: tb[0] = 10; settag()
    if tlb >= 2:
        a("s_lshl_b32 s64, s4, 5"); a("s_add_u32 s64, s64, s5"); a("s_lshl_b32 s64, s64, 20")
        if tlb == 2:
            for p in (pA + 4, pB + 2, pB + 4): a(f"s_load_dword s65, s[{p}:{p+1}], s64")
            a("s_waitcnt lgkmcnt(0)")
        else:
            a("s_cmp_lg_u32 s7, 2"); a("s_cbranch_scc1 L_tlb")
            a(f"v_mov_b32 v{vT}, s64")
            setexec(1)
            for i, p in enumerate((pA + 4, pB + 2, pB + 4)): a(f"global_load_dword v{204+i}, v{vT}, s[{p}:{p+1}] nt")
            setexec(-1)
            a("L_tlb:")
    if wot and wolate:
        a("s_cmp_lg_u32 s7, 3"); a("s_cbranch_scc1 L_wot")
        setexec(1)
        for i, p in enumerate((52, pB + 8)):
            a(f"s_mov_b32 s{sW}, s{p}"); a(f"s_mov_b32 s{sW+1}, s{p+1}")
            a(f"buffer_load_dword v{207+i}, v{vWo}, {srd(sW)}, 0 offen nt")
        setexec(-1)
        a("L_wot:")
    def trread(br, u, hh):
        r = vB + 16*br + 4*u + 2*hh
        return f"ds_read_b64_tr_b16 v[{r}:{r+1}], v{vTo} offset:{16384*br + 4096*u + 512*hh}"
    for br in range((1 if wpa == 0 else 0) if wolate else 2):
        for u in range(4):
            for hh in range(2): a(trread(br, u, hh))
        a("s_waitcnt lgkmcnt(0)")
    if warm & 1:
        setexec(0x00ff00ff00ff00ff)
        a(f"buffer_load_dword v200, v{vYs}, {srd(sWS)}, 0 offen sc1")
        setexec(-1)
    if fb:
        stop = 4 * (3 * NT + UT)
        a("s_and_b32 s3, s2, 7"); a("s_lshl_b32 s3, s3, 8"); a(f"s_add_u32 s3, s3, {hex(PGX)}")
        a(f"v_lshl_add_u32 v{vLd+4}, v{vLane}, 2, s3")
        a("s_lshr_b32 s8, s2, 3"); a("s_lshl_b32 s9, s8, 2"); a("s_add_u32 s12, s3, s9")
        a("s_lshl_b32 s9, s37, 10"); a("s_lshr_b32 s10, s9, 10")
        a(f"s_mov_b32 s{sCnt}, {hex(BOUND)}")
        a("s_cmp_lg_u32 s7, 1"); a("s_cbranch_scc1 L_fby")
        a(f"v_mov_b32 v{vLd+5}, s12")
        a("L_fb:")
        a(f"s_sleep {fsl}")
        a(f"ds_read_b32 v{vLd}, v{vZero} offset:{PR}")
        a(f"s_sub_u32 s{sCnt}, s{sCnt}, 1"); a("s_cbranch_scc1 L_fbx")
        a("s_waitcnt lgkmcnt(0)")
        a(f"v_readfirstlane_b32 s11, v{vLd}")
        a(f"v_or_b32 v{vLd}, s9, v{vLd}")
        setexec(1)
        a(f"buffer_store_dword v{vLd}, v{vLd+5}, {srd(sWS)}, 0 offen")
        setexec(0x1ffffffff if gfb else 0xffffffff)
        a(f"buffer_load_dword v{vLd+1}, v{vLd+4}, {srd(sWS)}, 0 offen sc1")
        a(vm(0))
        if gfb:
            a(f"v_readlane_b32 s12, v{vLd+1}, 32")
            a("s_mov_b32 exec_hi, 0")
            a("s_sub_u32 s12, s12, s9"); a("s_cmp_lt_u32 s12, 1024"); a("s_cselect_b32 s12, s12, 512")
            if gh:
                a(f"s_cmp_ge_u32 s12, {512 + gb}" if gb else f"s_cmp_le_u32 s12, {512 - gh}"); a("s_cselect_b32 s12, 2, 0")
                a(f"v_add_u32 v{vLd+2}, {fbd}, v{vLd}")
            else:
                a(f"s_sub_u32 s12, {512 + fbd}, s12")
                a(f"v_add_u32 v{vLd+2}, s12, v{vLd}")
        else: a(f"v_add_u32 v{vLd+2}, {fbd}, v{vLd}")
        a(f"v_lshrrev_b32 v{vLd+3}, 10, v{vLd+1}")
        a(f"v_cmp_eq_u32 vcc, s10, v{vLd+3}")
        a(f"v_cmp_ge_u32 s[40:41], v{vLd+1}, v{vLd+2}")
        if f3:
            a(f"v_add_u32 v{vLd+2}, {f3}, v{vLd+2}")
            a(f"v_cmp_ge_u32 s[14:15], v{vLd+1}, v{vLd+2}")
            a("s_and_b64 s[14:15], vcc, s[14:15]"); a("s_bcnt1_i32_b64 s14, s[14:15]")
        a("s_and_b64 vcc, vcc, s[40:41]")
        a("s_bcnt1_i32_b64 s3, vcc")
        a(f"s_cmp_ge_u32 s3, {fbn}")
        a("s_cselect_b32 s3, 1, s12" if gh else "s_cselect_b32 s3, 1, 0")
        if f3: a(f"s_cmp_ge_u32 s14, {fbn}"); a("s_cselect_b32 s3, 2, s3")
        a(f"v_mov_b32 v{vLd}, s3")
        setexec(1)
        a(f"ds_write_b32 v{vZero}, v{vLd} offset:{PR+4}")
        setexec(-1)
        a(f"s_cmp_lt_u32 s11, {stop}")
        a("s_cbranch_scc1 L_fb")
        a("s_branch L_fbx")
        a("L_fby:")
        if gfb:
            a("s_cmp_lg_u32 s7, 2"); a("s_cbranch_scc1 L_fbx")
            a("s_cmp_lg_u32 s8, 0"); a("s_cbranch_scc1 L_fbx")
            a(f"v_add_u32 v{vLd+5}, 128, v{vLd+4}")
            a("s_add_u32 s13, s9, 512"); a(f"v_mov_b32 v{vLd}, s13")
            setexec(0xffffffff)
            a(f"buffer_store_dword v{vLd}, v{vLd+5}, {srd(sWS)}, 0 offen")
            setexec(-1)
            a("s_lshl_b32 s3, s2, 8"); a(f"s_add_u32 s3, s3, {hex(PGX + 0x800)}"); a(f"v_mov_b32 v{vLd+6}, s3")
            a(f"s_add_u32 s16, s24, {hex(PGX + 0x800)}"); a("s_addc_u32 s17, s25, 0")
            a("L_g:")
            for _ in range(gn): a(f"s_sleep {gsl}")
            a(f"ds_read_b32 v{vLd}, v{vZero} offset:{PR}")
            setexec(0xffffffff)
            a(f"buffer_load_dword v{vLd+1}, v{vLd+4}, {srd(sWS)}, 0 offen sc1")
            a(f"s_sub_u32 s{sCnt}, s{sCnt}, 1"); a("s_cbranch_scc1 L_gx")
            a("s_waitcnt vmcnt(0) lgkmcnt(0)")
            a(f"v_readfirstlane_b32 s11, v{vLd}")
            a(f"v_lshrrev_b32 v{vLd+3}, 10, v{vLd+1}")
            a(f"v_cmp_eq_u32 vcc, s10, v{vLd+3}")
            a(f"v_and_b32 v{vLd+1}, 0x3ff, v{vLd+1}")
            a(f"s_cmp_ge_u32 s11, {stop}"); a("s_cbranch_scc1 L_gx")
            a("s_cmp_eq_u32 vcc_lo, -1"); a("s_cbranch_scc0 L_g")
            for sh_ in (8, 4, 2, 1):
                a(f"v_add_u32_dpp v{vLd+1}, v{vLd+1}, v{vLd+1} {dpp(f'row_ror:{sh_}')}"); a("s_nop 1")
            a(f"v_readlane_b32 s12, v{vLd+1}, 0"); a(f"v_readlane_b32 s13, v{vLd+1}, 16")
            a("s_add_u32 s12, s12, s13"); a("s_add_u32 s12, s12, 16"); a("s_lshr_b32 s12, s12, 5"); a("s_or_b32 s12, s12, s9")
            a(f"v_mov_b32 v{vLd}, s12")
            setexec(1)
            a(f"buffer_store_dword v{vLd}, v{vLd+6}, {srd(sWS)}, 0 offen sc1")
            if gh: a("s_sleep 48")
            for i in range(8): a(f"s_load_dword s{64+i if i < 4 else 74+i}, s[16:17], {256*i} glc")
            a("s_waitcnt lgkmcnt(0)")
            regs = [64, 65, 66, 67, 78, 79, 80, 81] if False else [64+i if i < 4 else 74+i for i in range(8)]
            a("s_mov_b32 s13, 0"); a("s_mov_b32 s14, 0")
            for r in regs:
                a(f"s_sub_u32 s{r}, s{r}, s9"); a(f"s_or_b32 s14, s14, s{r}"); a(f"s_add_u32 s13, s13, s{r}")
            a("s_cmp_lt_u32 s14, 1024"); a("s_cbranch_scc0 L_g")
            a("s_sub_u32 s12, s12, s9"); a("s_lshl_b32 s12, s12, 3"); a("s_sub_i32 s13, s13, s12")
            a(f"s_add_i32 s13, s13, {gz}"); a(f"s_mul_i32 s13, s13, {2 if gh else gfb}"); a("s_ashr_i32 s13, s13, 4")
            a("s_add_u32 s13, s13, 512"); a("s_or_b32 s13, s13, s9")
            setexec(0xffffffff)
            a(f"v_mov_b32 v{vLd}, s13")
            a(f"buffer_store_dword v{vLd}, v{vLd+5}, {srd(sWS)}, 0 offen")
            a("s_branch L_g")
            a("L_gx:")
            setexec(-1)
        a("L_fbx:")
    a("s_cmp_lg_u32 s7, 0")
    a("s_cbranch_scc1 L_h2")
    if warm & 1:
        a(f"buffer_load_dword v201, v{vOs}, {srd(sWS)}, 0 offen sc1")
        a(f"buffer_load_dword v202, v{vMx}, {srd(sWS)}, 0 offen sc1")
    def wsum(M, Lr, pairs, tmp):
        for i, (m, l) in enumerate(pairs): a(f"v_sub_f32 v{tmp+i}, v{m}, v{M}")
        for i in range(len(pairs)): a(f"v_exp_f32 v{tmp+i}, v{tmp+i}")
        a("s_nop 0")
        a(f"v_mul_f32 v{Lr}, v{tmp}, v{pairs[0][1]}")
        for i, (m, l) in list(enumerate(pairs))[1:]: a(f"v_fma_f32 v{Lr}, v{tmp+i}, v{l}, v{Lr}")
    def mlwg(br, M):
        for i in range(2): a(f"ds_read_b128 {v4(mlr+4*i)}, v{vZero} offset:{ML + 32*br + 16*i}")
        a("s_waitcnt lgkmcnt(0)")
        a(f"v_max3_f32 v{M}, v{mlr}, v{mlr+2}, v{mlr+4}")
        a(f"v_max_f32 v{M}, v{M}, v{mlr+6}")
        a(f"v_and_b32 v{M}, v{vNm}, v{M}")
        wsum(M, M + 1, [(mlr + 2*w, mlr + 2*w + 1) for w in range(4)], vE)
        a(f"v_and_b32 v{M+1}, v{vNm}, v{M+1}")
    def opreads(br):
        def f():
            for w in range(4): a(f"ds_read_b64 v[{vE+4+2*w}:{vE+5+2*w}], v{vOr} offset:{OP + 2048*br + 512*w}")
            return 4
        return f
    def combine(dst, fac):
        for w in range(4):
            a(f"s_waitcnt lgkmcnt({3-w})")
            if w == 0: a(f"v_mul_f32 v{dst}, v{fac(0)}, v{vE+4}"); a(f"v_mul_f32 v{dst+1}, v{fac(0)}, v{vE+5}")
            else: a(f"v_fma_f32 v{dst}, v{fac(w)}, v{vE+4+2*w}, v{dst}"); a(f"v_fma_f32 v{dst+1}, v{fac(w)}, v{vE+5+2*w}, v{dst+1}")
    vML = vD
    waitflags("L_w1", FL, vZero, vE, "3", slp)
    mlwg(0, vML)
    opreads(0)()
    combine(vOA, lambda w: vE + w)
    waitflags("L_w2", FL, vZero, vE, "4", slp)
    mlwg(1, vML + 2)
    for r in range(4): tagged(vGr + r, vML + r, 0)
    if sml:
        a(f"s_xor_b32 s3, s{sMx}, 0x400"); a("s_add_u32 s16, s24, s3"); a("s_addc_u32 s17, s25, 0")
        a(f"s_mov_b32 s{sCnt}, {hex(BOUND)}")
        if xfast == 2:
            a("s_getreg_b32 s3, hwreg(HW_REG_XCC_ID, 0, 4)"); a("s_lshl_b32 s27, s3, 10")
            setexec(2)
            for r in range(4): a(f"v_or_b32 v{vGr+r}, s27, v{vTag+r}")
            a(f"v_add_u32 v{vMx}, 16, v{vMx}")
            setexec(3)
        else: setexec(1)
        a(f"buffer_store_dwordx4 {v4(vGr)}, v{vMx}, {srd(sWS)}, 0 offen sc1")
        setexec(-1)
        a("L_ml:")
        a("s_load_dwordx4 s[8:11], s[16:17], 0 glc")
        a(f"s_sub_u32 s{sCnt}, s{sCnt}, 1"); a("s_cbranch_scc1 L_end")
        a("s_waitcnt lgkmcnt(0)")
        for i in range(4):
            a(f"s_xor_b32 s{12+i}, s{8+i}, s37")
            if i: a(f"s_xor_b32 s{12+i}, s{12+i}, {hex(TX[i])}")
        a("s_or_b32 s12, s12, s13"); a("s_or_b32 s14, s14, s15"); a("s_or_b32 s12, s12, s14"); a("s_and_b32 s12, s12, 0x3ff")
        a("s_cbranch_scc1 L_ml")
        for r in range(4): a(f"v_and_b32 v{vLd+r}, s{8+r}, v{vNm}")
    else:
        a(f"v_xor_b32 v{vT}, 0x400, v{vMx}")
        a(f"s_mov_b32 s{sCnt}, {hex(BOUND)}")
        setexec(1)
        a(f"buffer_store_dwordx4 {v4(vGr)}, v{vMx}, {srd(sWS)}, 0 offen sc1")
        setexec(-1)
        a("L_ml:")
        a(f"buffer_load_dwordx4 {v4(vLd)}, v{vT}, {srd(sWS)}, 0 offen sc1")
        a(f"s_sub_u32 s{sCnt}, s{sCnt}, 1"); a("s_cbranch_scc1 L_end")
        a("s_waitcnt vmcnt(0)")
        badtag(vLd, "vcc")
        a("s_cmp_eq_u64 vcc, 0")
        a("s_cbranch_scc1 L_ml2")
        a(f"s_sleep {slp}")
        if not nox: a("s_branch L_ml")
        a("L_ml2:")
        for r in range(4): a(f"v_and_b32 v{vLd+r}, v{vNm}, v{vLd+r}")
    a(f"v_max_f32 v{vU}, v{vML}, v{vLd}")
    wsum(vU, vT, [(vML, vML + 1), (vLd, vLd + 1)], vE)
    a(f"v_rcp_f32 v{vT}, v{vT}")
    a(f"v_max_f32 v{vU}, v{vML+2}, v{vLd+2}")
    a(f"v_mul_f32 v{vT}, v{vT}, v{vE}")
    a(f"v_mul_f32 v{vOA}, v{vOA}, v{vT}"); a(f"v_mul_f32 v{vOA+1}, v{vOA+1}, v{vT}")
    tagged(vGr, vOA); tagged(vGr + 1, vOA + 1)
    wsum(vU, vT, [(vML + 2, vML + 3), (vLd + 2, vLd + 3)], vE)
    a(f"v_rcp_f32 v{vT}, v{vT}")
    for w in range(4): a(f"v_sub_f32 v{mlr+2*w}, v{mlr+2*w}, v{vU}")
    for w in range(4): a(f"v_exp_f32 v{mlr+2*w}, v{mlr+2*w}")
    a("s_nop 0")
    for w in range(4): a(f"v_mul_f32 v{mlr+2*w}, v{mlr+2*w}, v{vT}")
    def xcheck():
        if xfast == 2:
            a("s_cmp_lg_u32 s7, 0"); a("s_cbranch_scc1 L_x1")
            if owarm:
                setexec(0xffff)
                a(f"buffer_load_ushort v203, v{vOut}, {srd(sOUT)}, 0 offen {'sc1' if owarm == 2 else ''}")
                setexec(-1)
            a("s_lshl_b32 s3, s5, 11"); a(f"s_add_u32 s3, s3, {hex(MLX + 16)}"); a(f"v_lshl_add_u32 v{vT}, v{vLane}, 8, s3")
            setexec(0xff)
            a(f"buffer_load_dwordx4 {v4(vLd)}, v{vT}, {srd(sWS)}, 0 offen sc1")
            a(vm(0))
            for r in range(4): a(f"v_xor_b32 v{vLd+r}, v{vLd+r}, v{vTag+r}")
            a(f"v_bitop3_b32 v{vE}, v{vLd}, v{vLd+1}, s27 bitop3:0x7e")
            a(f"v_bitop3_b32 v{vE+1}, v{vLd+2}, v{vLd+3}, s27 bitop3:0x7e")
            a(f"v_or_b32 v{vE}, v{vE}, v{vE+1}")
            a(f"v_cmp_ne_u32 s[42:43], 0, v{vE}")
            setexec(-1)
            a("L_x1:")
    def waitpr(lab, n, sleep=0):
        a(f"s_mov_b32 s{sCnt}, {hex(BOUND if sleep else BOUND * 16)}")
        a(f"{lab}:")
        if sleep: a(f"s_sleep {sleep}")
        a(f"ds_read_b32 v{vE}, v{vZero} offset:{PR}")
        a(f"s_sub_u32 s{sCnt}, s{sCnt}, 1"); a("s_cbranch_scc1 L_end")
        a("s_waitcnt lgkmcnt(0)")
        a(f"v_readfirstlane_b32 s3, v{vE}")
        a(f"s_cmp_ge_u32 s3, {n}"); a(f"s_cbranch_scc0 {lab}")
    if wolate:
        waitpr("L_wx", 4 * (3 * NT + S), slp)
        xcheck()
    a("L_h2:")
    if wolate == 2: waitflags("L_w3a", FL, vZero, vE, "4", slp)
    if wolate == 2:
        for br, p in enumerate((52, pB + 8)): dma(p, vWo, 8192, WO + 16384*br, "-")
    waitflags("L_w3", FL, vZero, vE, "5", slp2 if wolate == 1 else slp)
    if wolate == 3:
        if wpa is None:
            waitpr("L_wp", wpr); dma(52, vWo, 8192, WO, "-")
        else:
            if wpa: waitpr("L_wpa", wpa); dma(52, vWo, 8192, WO, "-")
            waitpr("L_wp", wpr)
        dma(pB + 8, vWo, 8192, WO + 16384, "-")
    if wolate == 1:
        for br, p in enumerate((52, pB + 8)): dma(p, vWo, 8192, WO + 16384*br, "-")
    if not wolate: xcheck()
    waitflags("L_w4", FL, vZero, vE, "6", 0, opreads(1))
    a("s_cmp_lg_u32 s7, 0")
    a("s_cbranch_scc1 L_h4")
    combine(vOA, lambda w: mlr + 2*w)
    tagged(vGr + 2, vOA); tagged(vGr + 3, vOA + 1)
    if xfast == 2:
        a("s_cmp_eq_u64 s[42:43], 0"); a("s_cbranch_scc1 L_x2")
        a(f"buffer_store_dwordx4 {v4(vGr)}, v{vOs}, {srd(sWS)}, 0 offen sc1")
        a("s_branch L_x3")
        a("L_x2:")
        a(f"buffer_store_dwordx4 {v4(vGr)}, v{vOs}, {srd(sWS)}, 0 offen")
        a("L_x3:")
    else: a(f"buffer_store_dwordx4 {v4(vGr)}, v{vOs}, {srd(sWS)}, 0 offen {'' if xfast else 'sc1'}")
    if tst: stamp(4)
    a("L_h4:")
    if wolate == 4:
        for br, p in enumerate((52, pB + 8)): dma(p, vWo, 8192, WO + 16384*br, "-")
    if stamps: a("s_waitcnt lgkmcnt(0)")
    poll2("L_op", vOg, f"s{s4k} offen", pp, "sc1", pko)
    if tst == 1: stamp(6); a("s_waitcnt lgkmcnt(0)")
    a(f"v_cvt_pk_bf16_f32 v{vLd}, v{vLd}, v{vLd+1}"); a(f"v_cvt_pk_bf16_f32 v{vLd+2}, v{vLd+2}, v{vLd+3}")
    a(f"ds_write2st64_b32 v{vOw}, v{vLd}, v{vLd+2} offset0:{OB // 256} offset1:{OB // 256 + 4}")
    if not tbar: sethf(3)
    def oreads(br):
        def f():
            for u in range(4): a(f"ds_read_b128 {v4(vXa+16*br+4*u)}, v{vOf} offset:{OB + 1024*br + 64*u}")
            return 4
        return f
    if tbar:
        a("s_waitcnt lgkmcnt(0)"); a("s_barrier")
        oreads(0)()
    elif ride:
        waitflags("L_w5", HF, vZero, vE, "3", 0, oreads(0))
    else:
        a("s_waitcnt lgkmcnt(0)")
        waitflags("L_w5", HF, vZero, vE, "3", 0, None)
        oreads(0)()
    todo = [(("o", 1, u), f"ds_read_b128 {v4(vXa+16+4*u)}, v{vOf} offset:{OB + 1024 + 64*u}") for u in range(4)]
    if wolate:
        todo = [(("t", 0, u, hh), trread(0, u, hh)) for u in range(4) for hh in range(2) if wpa != 0] + todo + [(("t", 1, u, hh), trread(1, u, hh)) for u in range(4) for hh in range(2)]
    fly = [("o", 0, u) for u in range(4)]
    for br in range(2):
        for u in range(4):
            while todo and len(fly) < 15:
                k, ins = todo.pop(0); a(ins); fly.append(k)
            need = [i for i, k in enumerate(fly) if k[1:3] == (br, u)]
            if need: fly = fly[need[-1] + 1:]
            a(f"s_waitcnt lgkmcnt({len(fly)})")
            a(f"v_mfma_f32_16x16x32_bf16 {v4(vD+4*br)}, {v4(vXa+16*br+4*u)}, {v4(vB+16*br+4*u)}, {'0' if u == 0 else v4(vD+4*br)}")
    a("s_nop 3")
    a(f"v_mov_b32_dpp v{vE}, v{vD} {dpp('row_ror:8')}")
    tagged(vGr, vD)
    a("s_nop 1")
    a(f"v_mov_b32_dpp v{vE+1}, v{vD+4} {dpp('row_ror:8')}")
    tagged(vGr + 1, vE); tagged(vGr + 2, vD + 4); tagged(vGr + 3, vE + 1)
    setexec(0x00ff00ff00ff00ff)
    a(f"buffer_store_dwordx4 {v4(vGr)}, v{vYs}, {srd(sWS)}, 0 offen {ypol}")
    setexec(-1)
    a("s_cmp_lg_u32 s7, 0")
    a("s_cbranch_scc1 L_end")
    stamp(5)
    vP0 += 16
    poll2("L_poll", vGa, "s38 offen", pp, gpol, pk, bt)
    if tst == 2: stamp(6)
    a("s_nop 0")
    a(f"v_add_f32_dpp v{vE}, v{vLd}, v{vLd} {dpp('row_ror:8', 0x3)}")
    a(f"v_add_f32_dpp v{vE+1}, v{vLd+2}, v{vLd+2} {dpp('row_ror:8', 0x3)}")
    a(f"v_add_f32_dpp v{vE}, v{vLd+1}, v{vLd+1} {dpp('row_ror:8', 0xc)}")
    a(f"v_add_f32_dpp v{vE+1}, v{vLd+3}, v{vLd+3} {dpp('row_ror:8', 0xc)}")
    a("s_nop 0")
    a(f"v_add_f32_dpp v{vLd}, v{vE}, v{vE} {dpp('row_shl:4', 0x5)}")
    a(f"v_add_f32_dpp v{vLd}, v{vE+1}, v{vE+1} {dpp('row_shr:4', 0xa)}")
    xswap("v_add_f32", vLd, vU)
    a(f"v_cvt_pk_bf16_f32 v{vLd}, v{vLd}, v{vLd}")
    setexec(0xffff)
    a(f"buffer_store_short v{vLd}, v{vOut}, {srd(sOUT)}, 0 offen {opol}")
    a("s_cmp_lg_u32 s2, 0")
    a("s_cbranch_scc1 L_fin")
    setexec(1)
    a(f"buffer_store_dword v{vT64}, v{vZero}, {srd(sWS)}, 0 offen sc1")
    a("L_fin:")
    if stamps:
        a("s_waitcnt vmcnt(0)")
        stamp(7)
        put_stamps((4, 5, 6, 7))
    a("L_end:")
    a("s_endpgm")
    a('.section .rodata,"a"'); a(".p2align 6"); a(f".amdhsa_kernel {KN}")
    a("  .amdhsa_next_free_vgpr 256"); a("  .amdhsa_next_free_sgpr 102"); a("  .amdhsa_accum_offset 256")
    a("  .amdhsa_group_segment_fixed_size 0"); a("  .amdhsa_kernarg_size 104"); a("  .amdhsa_user_sgpr_count 2")
    a("  .amdhsa_user_sgpr_kernarg_segment_ptr 1"); a("  .amdhsa_system_sgpr_workgroup_id_x 1"); a(".end_amdhsa_kernel")
    return "\n".join(x for x in L if x is not None) + "\n"


if __name__ == "__main__":
    import os
    os.makedirs("k", exist_ok=True)
    names = []
    for spec in sys.argv[1:]:
        name, _, kv = spec.partition(":")
        kw = {}
        for item in filter(None, kv.split(",")):
            k, v = item.split("=")
            kw[k] = v.replace("+", " ") if k in ("thr", "pthr", "polkv", "polw", "nw", "fthr", "sthr", "ypol", "gpol", "opol", "thr2", "gmask", "f3thr") else int(v)
        open(f"k/{name}.s", "w").write(gen(**kw))
        names.append(f'"work/k/{name}.s"')
    print(", ".join(names))
```
